```python
import torch

def _softmax(x, axis=-1):
    return torch.softmax(x, dim=axis)
def _gelu(x):
    return torch.nn.functional.gelu(x, approximate="tanh")
def _silu(x):
    return torch.nn.functional.silu(x)
def _sigmoid(x):
    return torch.sigmoid(x)
def _layernorm(x, axis=-1, eps=1e-5):
    m = x.mean(dim=axis, keepdim=True)
    v = x.var(dim=axis, keepdim=True, unbiased=False)
    return (x - m) / torch.sqrt(v + eps)
def _scatter_add(tgt, idx, src, axis=0):
    return tgt.clone().index_add_(axis, idx, src)
def _segment_sum(src, seg, n):
    out = torch.zeros((n,) + src.shape[1:], dtype=src.dtype)
    return out.index_add_(0, seg, src)
def _pad(x, pw):
    flat = tuple(v for pair in reversed(pw) for v in pair)
    return torch.nn.functional.pad(x, flat)

kernel_name = 'parallel_sum__spectral_gfnet__glu_gated_bilinear__prompt'

def setup_inputs():

    _w = (lambda a: (lambda t: t.to(torch.bfloat16) if t.is_floating_point() else t)(torch.as_tensor(a)))
    def _A_setup():
        B, S, D = 1, 2048, 512
        Df = D // 2 + 1
        return {
            "x": _w((lambda *s: torch.randn(*s, dtype=torch.bfloat16) * 0.05)(B, S, D)),
            "w_r": _w((lambda *s: torch.randn(*s, dtype=torch.bfloat16) * 0.4)(S, Df) * 0.02),
            "w_i": _w((lambda *s: torch.randn(*s, dtype=torch.bfloat16) * 0.4)(S, Df) * 0.02),
        }
    _A_in = _A_setup()

    def _B_setup():
        B, S, D, F = 1, 2048, 512, 1792
        return {
            "x": _w((lambda *s: torch.randn(*s, dtype=torch.bfloat16) * 0.05)(B, S, D)),
            "w_gate": _w((lambda *s: torch.randn(*s, dtype=torch.bfloat16) * 0.2)(D, F) * (D ** -0.5)),
            "w_up": _w((lambda *s: torch.randn(*s, dtype=torch.bfloat16) * 0.2)(D, F) * (D ** -0.5)),
            "w_down": _w((lambda *s: torch.randn(*s, dtype=torch.bfloat16) * 0.2)(F, D) * (F ** -0.5)),
        }
    _B_in = _B_setup()

    return {
        "A_x": _A_in["x"],
        "A_w_r": _A_in["w_r"],
        "A_w_i": _A_in["w_i"],
        "B_x": _B_in["x"],
        "B_w_gate": _B_in["w_gate"],
        "B_w_up": _B_in["w_up"],
        "B_w_down": _B_in["w_down"],
    }

def reference(A_x, A_w_r, A_w_i, B_x, B_w_gate, B_w_up, B_w_down):
    def _A_ref(x, w_r, w_i):
        B, S, D = x.shape
        X = (lambda x, axes=(-2,-1): torch.fft.rfft2(x.float(), dim=axes))(x, axes=(-2, -1))
        W = w_r + 1j * w_i
        X = X * W
        y = (lambda x, s, axes=(-2,-1): torch.fft.irfft2(x, s=s, dim=axes).to(torch.bfloat16))(X, (S, D), axes=(-2, -1))
        return y

    def _B_ref(x, w_gate, w_up, w_down):
        g = torch.einsum("bsd,df->bsf", x, w_gate)
        u = torch.einsum("bsd,df->bsf", x, w_up)
        h = g * u
        return torch.einsum("bsf,fd->bsd", h, w_down)

    x = A_x
    xn = _layernorm(x, axis=-1)
    return x + _A_ref(xn, A_w_r, A_w_i) + _B_ref(xn, B_w_gate, B_w_up, B_w_down)
```

```python
import re

REG_RE = re.compile(r"(?<![\w.])([vas])(?:(\d+)|\[(\d+):(\d+)\])(?![\w])")
TRANS = ("v_exp_", "v_log_", "v_rcp_", "v_rsq_", "v_sqrt_", "v_sin_", "v_cos_")


def regs_of(tok):
    out = set()
    t = tok.strip()
    for m in REG_RE.finditer(t):
        k = m.group(1)
        if m.group(2) is not None:
            out.add((k, int(m.group(2))))
        else:
            for i in range(int(m.group(3)), int(m.group(4)) + 1):
                out.add((k, i))
    tl = t.lstrip("-|").rstrip("|")
    if tl in ("vcc", "vcc_lo", "vcc_hi"):
        out.add(("s", "vcc"))
    if tl in ("exec", "exec_lo", "exec_hi"):
        out.add(("s", "exec"))
    if tl == "m0":
        out.add(("s", "m0"))
    return out


def split_ops(s):
    ops, depth, cur = [], 0, ""
    for ch in s:
        if ch in "[(":
            depth += 1
        if ch in "])":
            depth -= 1
        if ch == "," and depth == 0:
            ops.append(cur.strip())
            cur = ""
        else:
            cur += ch
    if cur.strip():
        ops.append(cur.strip())
    return ops


class Inst:
    def __init__(self, text):
        self.text = text
        body = text.split(";")[0].strip()
        self.label = None
        self.op = None
        self.kind = "none"
        self.rd, self.wr = set(), set()
        self.states = 0
        self.passes = 0
        self.C = set()
        self.AB = set()
        self.D = set()
        self.dpp = False
        self.wide_store = False
        self.store_data = set()
        self.lds_dma = False
        if not body:
            return
        if body.endswith(":"):
            self.label = body[:-1]
            self.kind = "label"
            return
        if body.startswith("."):
            self.kind = "dir"
            return
        parts = body.split(None, 1)
        op = parts[0]
        self.op = op
        rest = parts[1] if len(parts) > 1 else ""
        ops = split_ops(rest)
        mods = ""
        if ops:
            last = ops[-1].split()
            if len(last) > 1:
                ops[-1] = last[0]
                mods = " ".join(last[1:])
        self.ops = ops
        self.mods = mods
        self.states = 1
        R = [regs_of(o) for o in ops]
        if op == "s_nop":
            self.kind = "salu"
            self.states = int(ops[0], 0) + 1
        elif op.startswith("v_mfma"):
            self.kind = "mfma"
            self.passes = 8 if "32x32x16" in op else 4 if "16x16x32" in op else None
            assert self.passes, op
            self.D, self.C = R[0], R[3]
            self.AB = R[1] | R[2]
            self.wr = set(R[0])
            self.rd = R[1] | R[2] | R[3]
        elif op.startswith("v_"):
            self.kind = "valu"
            self.dpp = any(x in mods for x in ("row_", "quad_perm", "wave_")) or "_dpp" in op
            if "permlane" in op and "swap" in op:
                self.wr = R[0] | R[1]
                self.rd = R[0] | R[1]
            elif "_co_" in op:
                self.wr = R[0] | R[1]
                for r in R[2:]:
                    self.rd |= r
            else:
                self.wr = set(R[0])
                for r in R[1:]:
                    self.rd |= r
                if op.startswith(("v_fmac", "v_dot2c", "v_pk_fmac", "v_writelane")) or self.dpp:
                    self.rd |= R[0]
        elif op.startswith("ds_"):
            self.kind = "ds"
            if op.startswith(("ds_read", "ds_bpermute", "ds_permute", "ds_swizzle")):
                self.wr = set(R[0])
                for r in R[1:]:
                    self.rd |= r
            else:
                for r in R:
                    self.rd |= r
        elif op.startswith(("buffer_", "global_")):
            self.kind = "vmem"
            if op in ("buffer_wbl2", "buffer_inv"):
                pass
            elif "lds" in mods.split() or "load_lds" in op:
                self.lds_dma = True
                for r in R:
                    self.rd |= r
                self.rd.add(("s", "m0"))
            elif "_load" in op:
                self.wr = set(R[0])
                for r in R[1:]:
                    self.rd |= r
                if "d16" in op:
                    self.rd |= R[0]
            elif "atomic" in op:
                for r in R:
                    self.rd |= r
                if "sc0" in mods.split():
                    self.wr = set(R[0])
            else:
                for r in R:
                    self.rd |= r
                data = R[0] if op.startswith("buffer_") else R[1]
                self.store_data = data
                self.wide_store = op.endswith(("x3", "x4"))
        elif op.startswith("s_"):
            self.kind = "smem" if op.startswith(("s_load", "s_buffer_load", "s_memtime", "s_memrealtime")) else "salu"
            nodst = ("s_cmp", "s_branch", "s_cbranch", "s_waitcnt", "s_barrier", "s_endpgm", "s_sleep",
                     "s_setprio", "s_bitcmp", "s_setreg", "s_sendmsg")
            if op.startswith(nodst):
                for r in R:
                    self.rd |= r
            else:
                if R:
                    self.wr = set(R[0])
                for r in R[1:]:
                    self.rd |= r
                if "saveexec" in op:
                    self.wr.add(("s", "exec"))
        else:
            raise ValueError("unknown instruction: " + text)

    def is_trans(self):
        return self.kind == "valu" and self.op.startswith(TRANS)


def vregs(s):
    return {r for r in s if r[0] in "va"}


def sregs(s):
    return {r for r in s if r[0] == "s"}


def need(p, c):
    n = 0
    if p.kind == "valu":
        pv, ps = vregs(p.wr), sregs(p.wr)
        if c.kind == "mfma" and pv & c.rd:
            n = max(n, 2)
        if c.kind == "vmem" and ps & c.rd:
            n = max(n, 5)
        if c.kind == "valu" and ps & c.rd:
            if c.op.startswith(("v_readlane", "v_writelane")):
                n = max(n, 4)
            elif "_co_" in c.op and c.op.startswith(("v_addc", "v_subb")) and not (ps & c.rd) - {("s", "vcc")}:
                n = max(n, 0)
            else:
                n = max(n, 2)
        if c.kind == "valu" and c.op.startswith(("v_readfirstlane", "v_readlane")) and pv & c.rd:
            n = max(n, 1)
        if p.is_trans() and c.kind in ("valu",) and not c.is_trans() and pv & c.rd:
            n = max(n, 1)
        if p.is_trans() and c.kind in ("vmem", "ds") and pv & c.rd:
            n = max(n, 1)
        if c.kind == "valu" and ("permlane" in c.op or c.dpp) and pv & c.rd:
            n = max(n, 2)
        if ("s", "exec") in ps:
            n = max(n, 5)
        if c.kind in ("salu", "smem") and ps & c.rd:
            n = max(n, 1)
    if p.kind == "mfma":
        big = {4: 8, 8: 12}[p.passes]
        if c.kind == "valu" and p.D & (c.rd | c.wr):
            n = max(n, big)
        if c.kind in ("vmem", "ds") and p.D & (c.rd | c.wr):
            n = max(n, big)
        if c.kind == "mfma":
            if p.D & c.AB:
                n = max(n, big)
            if p.D & c.C and not (p.D == c.C and p.passes == c.passes):
                n = max(n, {4: 6, 8: 10}[p.passes])
            if p.D & c.D and p.D != c.C:
                n = max(n, {4: 6, 8: 10}[p.passes])
        if c.kind == "valu" and p.C & c.wr:
            n = max(n, {4: 3, 8: 7}[p.passes])
        if c.kind in ("vmem", "ds") and p.C & c.wr:
            n = max(n, {4: 3, 8: 7}[p.passes])
    if p.kind == "salu" and ("s", "m0") in p.wr and (c.lds_dma or (c.op or "").startswith("s_sendmsg")):
        n = max(n, 1)
    if p.kind in ("vmem",) and p.wide_store and p.store_data & c.wr:
        n = max(n, 2 if c.kind in ("valu", "mfma") else 1)
    if p.kind == "ds" and p.op.startswith(("ds_write_b128", "ds_write_b96", "ds_write2_b64")) and c.kind == "valu" and vregs(p.rd) & c.wr:
        n = max(n, 2)
    return n


WINDOW = 24


def pad_hazards(lines):
    insts = [Inst(t) for t in lines]
    out = []

    def real(seq):
        return [i for i in seq if i.states > 0]

    for ins in insts:
        if ins.states > 0:
            dist = 0
            req = 0
            for p in reversed(out[-3 * WINDOW:]):
                if p.states == 0:
                    continue
                nn = need(p, ins)
                if nn > dist:
                    req = max(req, nn - dist)
                dist += p.states
                if dist > WINDOW:
                    break
            while req > 0:
                k = min(req, 16)
                out.append(Inst("    s_nop %d" % (k - 1)))
                req -= k
        out.append(ins)
    labels = {i.label: n for n, i in enumerate(out) if i.label}
    for n, ins in enumerate(out):
        if ins.op and ins.op.startswith(("s_branch", "s_cbranch")):
            tgt = ins.ops[0]
            if tgt not in labels:
                continue
            tail = real(out[max(0, n - 3 * WINDOW):n + 1])[-WINDOW:]
            head = real(out[labels[tgt]:labels[tgt] + 3 * WINDOW])[:WINDOW]
            for hi, c in enumerate(head):
                d0 = sum(x.states for x in head[:hi])
                dist = d0
                for p in reversed(tail):
                    nn = need(p, c)
                    if nn > dist:
                        raise RuntimeError("hazard across branch to %s: %s -> %s needs %d has %d"
                                           % (tgt, p.text.strip(), c.text.strip(), nn, dist))
                    dist += p.states
                if c.op and c.op.startswith(("s_branch", "s_endpgm")):
                    break
    return [i.text for i in out]


class Kern:
    def __init__(self, name):
        self.name = name
        self.lines = []
        self.nlabel = 0

    def __call__(self, text):
        for t in text.strip("\n").split("\n"):
            t = t.strip()
            if not t:
                continue
            self.lines.append(t if t.endswith(":") else "    " + t)

    def label(self, base):
        self.nlabel += 1
        return "L_%s_%s_%d" % (self.name[:12], base, self.nlabel)

    def text(self):
        return "\n".join(pad_hazards(self.lines)) + "\n"

    def max_regs(self):
        mv = ma = ms = -1
        for t in self.lines:
            body = t.split(";")[0]
            for m in REG_RE.finditer(body):
                hi = int(m.group(2)) if m.group(2) is not None else int(m.group(4))
                if m.group(1) == "v":
                    mv = max(mv, hi)
                elif m.group(1) == "a":
                    ma = max(ma, hi)
                else:
                    ms = max(ms, hi)
        return mv, ma, ms


def vr(base, n=1, k="v"):
    return "%s%d" % (k, base) if n == 1 else "%s[%d:%d]" % (k, base, base + n - 1)


def descriptor(kern, wg_y=False):
    mv, ma, ms = kern.max_regs()
    acc = max(4, ((mv + 1 + 3) // 4) * 4)
    nfv = acc + ma + 1 if ma >= 0 else mv + 1
    s = ".section .rodata,\"a\"\n.p2align 6\n.amdhsa_kernel %s\n" % kern.name
    s += "  .amdhsa_next_free_vgpr %d\n" % nfv
    s += "  .amdhsa_next_free_sgpr %d\n" % max(ms + 1, 16)
    s += "  .amdhsa_accum_offset %d\n" % acc
    s += "  .amdhsa_group_segment_fixed_size 0\n  .amdhsa_kernarg_size 80\n"
    s += "  .amdhsa_user_sgpr_count 2\n  .amdhsa_user_sgpr_kernarg_segment_ptr 1\n"
    s += "  .amdhsa_system_sgpr_workgroup_id_x 1\n"
    if wg_y:
        s += "  .amdhsa_system_sgpr_workgroup_id_y 1\n"
    s += ".end_amdhsa_kernel\n"
    return s


def kernel_text(kern):
    return (".text\n.globl %s\n.p2align 8\n.type %s,@function\n%s:\n" % (kern.name, kern.name, kern.name)
            + kern.text())
```

```python
import sys, math, struct
sys.path.insert(0, "dev")
from asmlib import *
import numpy as np

NAME = "parallel_sum__spectral_gfnet__glu_gated_bilinear__prompt"
WS_XN = 0x0
WS_WT = 0x200000
WS_H = 0x600000
WS_X1T = 0xE00000
WS_ZT = 0x1000000
XN_BYTES = 2048 * 512 * 2
WT_BYTES = 259 * 8192
H_BYTES = 64 * 112 * 1024
X1T_BYTES = 512 * 4096


def bf16_bits(x):
    u = struct.unpack("<I", struct.pack("<f", float(x)))[0]
    return ((u + 0x7FFF + ((u >> 16) & 1)) >> 16) & 0xFFFF


def f32_bits(x):
    return struct.unpack("<I", struct.pack("<f", float(x)))[0]


def srd(k, d, base_lo, base_hi, nbytes, add=0):
    if add:
        k("s_add_u32 s%d, s%d, 0x%x" % (d, base_lo, add))
        k("s_addc_u32 s%d, s%d, 0" % (d + 1, base_hi))
    else:
        k("s_mov_b32 s%d, s%d" % (d, base_lo))
        k("s_mov_b32 s%d, s%d" % (d + 1, base_hi))
    k("s_mov_b32 s%d, 0x%x" % (d + 2, nbytes))
    k("s_mov_b32 s%d, 0x00020000" % (d + 3))


def table_srd(k, d, sym, nbytes):
    k("s_getpc_b64 s[%d:%d]" % (d, d + 1))
    k("s_add_u32 s%d, s%d, %s@rel32@lo+4" % (d, d, sym))
    k("s_addc_u32 s%d, s%d, %s@rel32@hi+12" % (d + 1, d + 1, sym))
    k("s_mov_b32 s%d, 0x%x" % (d + 2, nbytes))
    k("s_mov_b32 s%d, 0x00020000" % (d + 3))


def rne_bf16(k, dst, src):
    k("v_cvt_pk_bf16_f32 v%d, v%d, v%d" % (dst, src, src))
    k("v_lshlrev_b32 v%d, 16, v%d" % (dst, dst))


def gen_k0():
    k = Kern("k0_prep_kernel")
    k("""
    s_cmp_ge_u32 s2, 256
    s_cbranch_scc1 K0_END
    s_load_dwordx4 s[4:7], s[0:1], 0      ; x, w_r
    s_load_dwordx2 s[8:9], s[0:1], 16     ; w_i
    s_load_dwordx2 s[10:11], s[0:1], 72   ; ws
    v_lshrrev_b32 v1, 5, v0
    v_and_b32 v2, 31, v0
    v_lshlrev_b32 v1, 10, v1
    v_lshl_add_u32 v1, v2, 4, v1
    s_lshl_b32 s3, s2, 13                 ; wg*8192
    v_lshlrev_b32 v3, 1, v0
    s_lshr_b32 s40, s2, 2                 ; k1
    s_and_b32 s41, s2, 3                  ; g
    s_lshl_b32 s42, s41, 8                ; 64*4g
    s_add_u32 s42, s42, s40               ; m0 = k1 + 64*4g
    s_waitcnt lgkmcnt(0)
    """)
    srd(k, 12, 4, 5, XN_BYTES)
    srd(k, 16, 6, 7, 2048 * 257 * 2)
    srd(k, 20, 8, 9, 2048 * 257 * 2)
    srd(k, 24, 10, 11, XN_BYTES, WS_XN)
    srd(k, 28, 10, 11, WT_BYTES, WS_WT)
    k("""
    buffer_load_dwordx4 v[8:11], v1, s[12:15], s3 offen
    buffer_load_dwordx4 v[12:15], v1, s[12:15], s3 offen offset:512
    """)
    for i in range(8):
        k2off = (i if i < 4 else 16 + i - 4) * 64
        k("s_add_u32 s43, s42, %d" % k2off)
        k("s_mul_i32 s%d, s43, 514" % (44 + i))
    for i in range(8):
        k("buffer_load_ushort v%d, v3, s[16:19], s%d offen" % (40 + i, 44 + i))
        k("buffer_load_ushort v%d, v3, s[20:23], s%d offen" % (48 + i, 44 + i))
    k("""
    v_cmp_eq_u32 vcc, 1, v0
    v_mov_b32 v4, 512
    v_cndmask_b32 v4, v4, 0, vcc
    v_cmp_eq_u32 s[60:61], 0, v0
    """)
    for i in range(8):
        k2off = (i if i < 4 else 16 + i - 4) * 64
        k("s_add_u32 s43, s42, %d" % k2off)
        k("s_sub_u32 s52, 2048, s43")
        k("s_and_b32 s52, s52, 2047")
        k("s_mul_i32 s52, s52, 514")
        k("v_mov_b32 v5, s52")
        k("v_mov_b32 v6, s%d" % (44 + i))
        k("v_cndmask_b32 v5, v5, v6, s[60:61]")
        k("v_add_u32 v%d, v5, v4" % (72 + i))
    for i in range(8):
        k("buffer_load_ushort v%d, v%d, s[16:19], 0 offen" % (56 + i, 72 + i))
        k("buffer_load_ushort v%d, v%d, s[20:23], 0 offen" % (64 + i, 72 + i))
    k("s_waitcnt vmcnt(32)")
    for i in range(8):
        k("v_lshlrev_b32 v%d, 16, v%d" % (16 + 2 * i, 8 + i))
        k("v_and_b32 v%d, 0xffff0000, v%d" % (17 + 2 * i, 8 + i))
    k("v_add_f32 v32, v16, v17")
    for i in range(2, 16):
        k("v_add_f32 v32, v32, v%d" % (16 + i))

    def allred(r, t):
        for sh in (8, 4, 2, 1):
            k("v_add_f32 v%d, v%d, v%d row_ror:%d" % (r, r, r, sh))
        k("v_mov_b32 v%d, v%d" % (t, r))
        k("v_permlane16_swap_b32 v%d, v%d" % (r, t))
        k("v_add_f32 v%d, v%d, v%d" % (r, r, t))
    allred(32, 33)
    k("v_mul_f32 v32, 0x3b000000, v32        ; mean (1/512)")
    k("v_sub_f32 v34, v16, v32")
    k("v_mul_f32 v35, v34, v34")
    for i in range(1, 16):
        k("v_sub_f32 v34, v%d, v32" % (16 + i))
        k("v_fmac_f32 v35, v34, v34")
    allred(35, 33)
    k("v_mul_f32 v35, 0x3b000000, v35")
    rne_bf16(k, 35, 35)
    k("v_add_f32 v35, 0x%x, v35" % f32_bits(1e-5))
    rne_bf16(k, 35, 35)
    k("v_sqrt_f32 v35, v35")
    rne_bf16(k, 35, 35)
    k("v_rcp_f32 v35, v35")
    rne_bf16(k, 32, 32)
    for i in range(8):
        k("v_sub_f32 v%d, v%d, v32" % (16 + 2 * i, 16 + 2 * i))
        k("v_sub_f32 v%d, v%d, v32" % (17 + 2 * i, 17 + 2 * i))
        k("v_cvt_pk_bf16_f32 v%d, v%d, v%d" % (8 + i, 16 + 2 * i, 17 + 2 * i))
        k("v_lshlrev_b32 v%d, 16, v%d" % (16 + 2 * i, 8 + i))
        k("v_and_b32 v%d, 0xffff0000, v%d" % (17 + 2 * i, 8 + i))
        k("v_mul_f32 v%d, v%d, v35" % (16 + 2 * i, 16 + 2 * i))
        k("v_mul_f32 v%d, v%d, v35" % (17 + 2 * i, 17 + 2 * i))
        k("v_cvt_pk_bf16_f32 v%d, v%d, v%d" % (8 + i, 16 + 2 * i, 17 + 2 * i))
    k("""
    buffer_store_dwordx4 v[8:11], v1, s[24:27], s3 offen
    buffer_store_dwordx4 v[12:15], v1, s[24:27], s3 offen offset:512
    s_waitcnt vmcnt(18)
    """)
    for i in range(4):
        k("v_lshl_or_b32 v%d, v%d, 16, v%d" % (80 + i, 41 + 2 * i, 40 + 2 * i))
        k("v_lshl_or_b32 v%d, v%d, 16, v%d" % (84 + i, 49 + 2 * i, 48 + 2 * i))
    k("""
    v_lshlrev_b32 v5, 13, v0              ; k*8192
    s_lshl_b32 s53, s2, 5                 ; (k1*4+g)*32
    buffer_store_dwordx4 v[80:83], v5, s[28:31], s53 offen
    buffer_store_dwordx4 v[84:87], v5, s[28:31], s53 offen offset:16
    s_waitcnt vmcnt(4)
    """)
    for i in range(4):
        k("v_lshl_or_b32 v%d, v%d, 16, v%d" % (88 + i, 57 + 2 * i, 56 + 2 * i))
        k("v_lshl_or_b32 v%d, v%d, 16, v%d" % (92 + i, 65 + 2 * i, 64 + 2 * i))
    k("""
    v_add_u32 v5, 0x200000, v5
    buffer_store_dwordx4 v[88:91], v5, s[28:31], s53 offen
    buffer_store_dwordx4 v[92:95], v5, s[28:31], s53 offen offset:16
K0_END:
    s_endpgm
    """)
    return k


def gen_k1():
    k = Kern("k1_gemm1_kernel")
    ACC = 0
    FP, FQ = 128, 152
    VA = 176
    VB = 180
    DA = 184
    DB = 188
    T = 192
    TID = 200
    k("""
    s_cmp_ge_u32 s2, 256
    s_cbranch_scc1 K1_END
    s_load_dwordx4 s[4:7], s[0:1], 32     ; wg, wu
    s_load_dwordx2 s[10:11], s[0:1], 72   ; ws
    v_mov_b32 v{TID}, v0
    s_and_b32 s40, s2, 7                  ; xcd
    s_lshr_b32 s41, s2, 3                 ; idx
    s_and_b32 s42, s40, 1
    s_lshl_b32 s42, s42, 3
    s_and_b32 s43, s41, 7
    s_add_u32 s42, s42, s43               ; mt
    s_lshr_b32 s43, s40, 1
    s_lshl_b32 s43, s43, 2
    s_lshr_b32 s44, s41, 3
    s_add_u32 s43, s43, s44               ; nt
    v_lshrrev_b32 v{T}, 6, v0
    s_nop 0
    v_readfirstlane_b32 s45, v{T}         ; wave id
    v_and_b32 v{T1}, 63, v0               ; lane
    """.format(TID=TID, T=T, T1=T + 1))
    table_srd(k, 24, "tabF", 512 * 1024)
    k("s_waitcnt lgkmcnt(0)")
    srd(k, 12, 10, 11, XN_BYTES, WS_XN)
    k("s_cmp_ge_u32 s43, 14")
    k("s_cbranch_scc1 K1_DFT_SETUP")
    k("s_lshl_b32 s47, s43, 8")
    k("s_add_u32 s16, s4, s47")
    k("s_addc_u32 s17, s5, 0")
    k("s_sub_u32 s18, %d, s47" % (512 * 1792 * 2))
    k("s_mov_b32 s19, 0x00020000")
    k("s_add_u32 s20, s6, s47")
    k("s_addc_u32 s21, s7, 0")
    k("s_mov_b32 s22, s18")
    k("s_mov_b32 s23, 0x00020000")
    k("s_movk_i32 s46, 3584")
    k("s_lshl_b32 s48, s42, 17")
    k("s_mov_b32 s49, 10")
    k("s_mov_b32 s50, 16")
    k("s_branch K1_SETUP_DONE")
    k("K1_DFT_SETUP:")
    k("s_sub_u32 s47, s43, 14")
    k("s_lshl_b32 s47, s47, 9")
    k("s_add_u32 s16, s24, s47")
    k("s_addc_u32 s17, s25, 0")
    k("s_sub_u32 s18, %d, s47" % (512 * 1024))
    k("s_mov_b32 s19, 0x00020000")
    k("s_add_u32 s20, s16, 256")
    k("s_addc_u32 s21, s17, 0")
    k("s_sub_u32 s22, s18, 256")
    k("s_mov_b32 s23, 0x00020000")
    k("s_movk_i32 s46, 1024")
    k("s_lshl_b32 s48, s42, 11")
    k("s_mov_b32 s49, 15")
    k("s_mov_b32 s50, 10")
    k("K1_SETUP_DONE:")
    L = T + 1
    for i in range(4):
        k("v_lshrrev_b32 v%d, 3, v%d" % (T + 2, L))
        k("s_lshl_b32 s51, s45, 5")
        k("s_add_u32 s51, s51, %d" % (8 * i))
        k("v_add_u32 v%d, s51, v%d" % (T + 2, T + 2))
        k("v_and_b32 v%d, 63, v%d" % (T + 3, T + 2))
        k("v_lshlrev_b32 v%d, s49, v%d" % (T + 3, T + 3))
        k("v_lshrrev_b32 v%d, 6, v%d" % (T + 4, T + 2))
        k("v_lshlrev_b32 v%d, s50, v%d" % (T + 4, T + 4))
        k("v_add3_u32 v%d, v%d, v%d, s48" % (T + 3, T + 3, T + 4))
        k("v_bfe_u32 v%d, v%d, 1, 3" % (T + 4, T + 2))
        k("v_and_b32 v%d, 7, v%d" % (T + 5, L))
        k("v_xor_b32 v%d, v%d, v%d" % (T + 4, T + 4, T + 5))
        k("v_lshl_add_u32 v%d, v%d, 4, v%d" % (T + 3, T + 4, T + 3))
        k("v_subrev_u32 v%d, %d, v%d" % (DA + i, 1024 * i, T + 3))
    k("v_lshrrev_b32 v%d, 4, v%d" % (T + 2, L))
    k("v_bfe_u32 v%d, v%d, 2, 2" % (T + 3, L))
    k("v_xor_b32 v%d, v%d, v%d" % (T + 3, T + 3, T + 2))
    k("v_lshlrev_b32 v%d, 6, v%d" % (T + 3, T + 3))
    k("v_and_b32 v%d, 3, v%d" % (T + 4, L))
    k("v_lshl_add_u32 v%d, v%d, 4, v%d" % (T + 3, T + 4, T + 3))
    k("s_lshl_b32 s51, s45, 4")
    k("v_add_u32 v%d, s51, v%d" % (T + 2, T + 2))
    for i in range(4):
        k("v_add_u32 v%d, %d, v%d" % (T + 4, 4 * i, T + 2))
        k("v_mul_lo_u32 v%d, v%d, s46" % (T + 4, T + 4))
        k("v_add_u32 v%d, v%d, v%d" % (T + 4, T + 4, T + 3))
        k("v_subrev_u32 v%d, %d, v%d" % (DB + i, 1024 * i, T + 4))
    k("""
    s_mov_b32 s52, 0
    s_mov_b32 s53, 0
    s_lshl_b32 s54, s45, 12
    s_lshl_b32 s55, s46, 6
    """)

    def dma_stage():
        k("s_mov_b32 m0, s54")
        for i in range(4):
            k("buffer_load_dwordx4 v%d, s[12:15], s52 offen offset:%d lds" % (DA + i, 1024 * i))
        k("s_add_u32 m0, s54, 49152")
        for i in range(4):
            k("buffer_load_dwordx4 v%d, s[16:19], s53 offen offset:%d lds" % (DB + i, 1024 * i))
        k("s_add_u32 m0, s54, 98304")
        for i in range(4):
            k("buffer_load_dwordx4 v%d, s[20:23], s53 offen offset:%d lds" % (DB + i, 1024 * i))
        k("s_add_u32 s52, s52, 128")
        k("s_add_u32 s53, s53, s55")

    for st in range(3):
        dma_stage()
        if st < 2:
            k("s_add_u32 s54, s54, 16384")
    k("s_sub_u32 s54, s54, 32768")
    k("""
    s_lshr_b32 s56, s45, 1                ; wm
    s_and_b32 s57, s45, 1                 ; wn
    v_and_b32 v{a}, 31, v{L}              ; row in 32 block
    v_lshrrev_b32 v{b}, 5, v{L}           ; h
    v_bfe_u32 v{c}, v{L}, 1, 3            ; swizzle (row>>1)&7
    s_lshl_b32 s58, s56, 13               ; wm*64 rows*128
    v_lshlrev_b32 v{a}, 7, v{a}
    v_add_u32 v{a}, s58, v{a}
    """.format(a=T + 2, b=T + 3, c=T + 4, L=L))
    for ks in range(4):
        k("v_add_u32 v%d, %d, v%d" % (T + 5, 2 * ks, T + 3))
        k("v_xor_b32 v%d, v%d, v%d" % (T + 5, T + 5, T + 4))
        k("v_lshl_add_u32 v%d, v%d, 4, v%d" % (VA + ks, T + 5, T + 2))
    k("""
    v_bfe_u32 v{r}, v{L}, 2, 2
    v_lshl_add_u32 v{a}, v{h}, 3, v{r}
    v_lshlrev_b32 v{a}, 8, v{a}
    v_bfe_u32 v{c}, v{L}, 4, 1
    v_lshl_add_u32 v{a}, v{c}, 5, v{a}
    v_and_b32 v{c}, 3, v{L}
    v_lshl_add_u32 v{a}, v{c}, 3, v{a}
    s_lshl_b32 s58, s57, 1
    """.format(r=T + 5, a=T + 2, h=T + 3, c=T + 4, L=L))
    for nb in range(2):
        k("s_add_u32 s59, s58, %d" % nb)
        k("v_xor_b32 v%d, s59, v%d" % (T + 6, T + 5))
        k("v_lshl_add_u32 v%d, v%d, 6, v%d" % (T + 6, T + 6, T + 2))
        k("v_add_u32 v%d, 49152, v%d" % (VB + nb, T + 6))
        k("v_add_u32 v%d, 98304, v%d" % (VB + 2 + nb, T + 6))
    for i in range(128):
        k("v_mov_b32 v%d, 0" % i)

    def reads(F, ks):
        out = []
        out.append("ds_read_b128 v[%d:%d], v%d" % (F, F + 3, VA + ks))
        for src in range(2):
            for nb in range(2):
                b = F + 8 + (src * 2 + nb) * 4
                out.append("ds_read_b64_tr_b16 v[%d:%d], v%d offset:%d" % (b, b + 1, VB + src * 2 + nb, ks * 4096))
                out.append("ds_read_b64_tr_b16 v[%d:%d], v%d offset:%d" % (b + 2, b + 3, VB + src * 2 + nb, ks * 4096 + 1024))
            if src == 0:
                out.append("ds_read_b128 v[%d:%d], v%d offset:4096" % (F + 4, F + 7, VA + ks))
        return out

    def mfmas(F, dft):
        out = []
        for sb in range(2):
            for src in range(2):
                for nb in range(2):
                    a = ACC + ((src * 2 + nb) * 2 + sb) * 16
                    x = "v[%d:%d]" % (F + 4 * sb, F + 4 * sb + 3)
                    b = F + 8 + (src * 2 + nb) * 4
                    w = "v[%d:%d]" % (b, b + 3)
                    A, B = (x, w) if dft else (w, x)
                    out.append("v_mfma_f32_32x32x16_bf16 v[%d:%d], %s, %s, v[%d:%d]" % (a, a + 15, A, B, a, a + 15))
        return out

    def interleave(ms, others, per=2):
        others = list(others)
        for m in ms:
            k(m)
            for _ in range(per):
                if others:
                    k(others.pop(0))
        for o in others:
            k(o)

    k("s_mov_b32 s60, 0                      ; stage")
    k("s_mov_b32 s61, 0")
    k("s_mov_b32 s63, -32768")
    k("s_waitcnt vmcnt(24)")
    k("s_barrier")
    for r in reads(FP, 0):
        k(r)
    k("s_cmp_ge_u32 s43, 14")
    k("s_cbranch_scc1 K1_LOOP_DFT")
    for dft in (0, 1):
        sfx = "DFT" if dft else "GU"
        k("K1_LOOP_%s:" % sfx)
        for ks in range(3):
            cur, nxt = (FP, FQ) if ks % 2 == 0 else (FQ, FP)
            k("s_waitcnt lgkmcnt(0)")
            interleave(mfmas(cur, dft), reads(nxt, ks + 1))
        k("s_waitcnt lgkmcnt(0)")
        k("s_cmp_eq_u32 s60, 7")
        k("s_cbranch_scc1 K1_TAIL_%s" % sfx)
        k("s_waitcnt vmcnt(12)")
        k("s_cmp_lt_u32 s60, 6")
        k("s_cbranch_scc1 K1_W_%s" % sfx)
        k("s_waitcnt vmcnt(0)")
        k("K1_W_%s:" % sfx)
        k("s_barrier")
        k("s_add_u32 s61, s61, 1")
        k("s_cmp_eq_u32 s61, 3")
        k("s_cselect_b32 s62, s63, 16384")
        k("s_cselect_b32 s61, 0, s61")
        for i in range(8):
            k("v_add_u32 v%d, s62, v%d" % (VA + i, VA + i))
        ms = mfmas(FQ, dft)
        interleave(ms[:5], reads(FP, 0))
        k("s_cmp_ge_u32 s60, 5")
        k("s_cbranch_scc1 K1_ND_%s" % sfx)
        dma_stage()
        k("s_add_u32 s54, s54, s62")
        k("K1_ND_%s:" % sfx)
        for m in ms[5:]:
            k(m)
        k("s_add_u32 s60, s60, 1")
        k("s_branch K1_LOOP_%s" % sfx)
        k("K1_TAIL_%s:" % sfx)
        for m in mfmas(FQ, dft):
            k(m)
        if not dft:
            srd(k, 28, 10, 11, H_BYTES, WS_H)
            k("v_lshlrev_b32 v%d, 4, v%d" % (T + 2, L))
            k("s_lshl_b32 s58, s42, 2")
            k("s_lshl_b32 s59, s56, 1")
            k("s_add_u32 s58, s58, s59")
            k("s_mul_i32 s58, s58, 112")
            k("s_lshl_b32 s59, s43, 3")
            k("s_add_u32 s58, s58, s59")
            k("s_lshl_b32 s59, s57, 2")
            k("s_add_u32 s58, s58, s59")
            k("s_lshl_b32 s58, s58, 10")
            k("s_add_u32 s59, s58, %d" % (112 * 1024))
            for sb in range(2):
                for nb in range(2):
                    g = ACC + ((0 * 2 + nb) * 2 + sb) * 16
                    u = ACC + ((1 * 2 + nb) * 2 + sb) * 16
                    for i in range(16):
                        k("v_mul_f32 v%d, v%d, v%d" % (g + i, g + i, u + i))
                    for i in range(8):
                        k("v_cvt_pk_bf16_f32 v%d, v%d, v%d" % (u + i, g + 2 * i, g + 2 * i + 1))
                    for qq in range(2):
                        k("buffer_store_dwordx4 v[%d:%d], v%d, s[28:31], s%d offen offset:%d"
                          % (u + 4 * qq, u + 4 * qq + 3, T + 2, 58 + sb, (2 * nb + qq) * 1024))
            k("s_endpgm")
        else:
            srd(k, 28, 10, 11, X1T_BYTES, WS_X1T)
            k("v_and_b32 v%d, 31, v%d" % (T + 2, L))
            k("v_lshlrev_b32 v%d, 12, v%d" % (T + 2, T + 2))
            k("v_lshrrev_b32 v%d, 5, v%d" % (T + 3, L))
            k("v_lshl_add_u32 v%d, v%d, 4, v%d" % (T + 2, T + 3, T + 2))
            k("s_sub_u32 s58, s43, 14")
            k("s_lshl_b32 s58, s58, 20")
            k("s_lshl_b32 s59, s57, 18")
            k("s_add_u32 s58, s58, s59")
            k("s_lshl_b32 s59, s42, 8")
            k("s_add_u32 s58, s58, s59")
            k("s_lshl_b32 s59, s56, 7")
            k("s_add_u32 s58, s58, s59")
            for src in range(2):
                for nb in range(2):
                    k("s_add_u32 s59, s58, %d" % ((128 * src + 32 * nb) * 4096))
                    for sb in range(2):
                        a = ACC + ((src * 2 + nb) * 2 + sb) * 16
                        for i in range(8):
                            k("v_cvt_pk_bf16_f32 v%d, v%d, v%d" % (a + i, a + 2 * i, a + 2 * i + 1))
                        for qq in range(2):
                            k("buffer_store_dwordx4 v[%d:%d], v%d, s[28:31], s59 offen offset:%d"
                              % (a + 4 * qq, a + 4 * qq + 3, T + 2, sb * 64 + qq * 32))
    k("K1_END:")
    k("s_endpgm")
    return k


def n1_of_slot(sb, g, j):
    return 32 * sb + 16 * (g >> 1) + 4 * (g & 1) + (j & 3) + 8 * (j >> 2)


def d16_row_of_slot(g, j):
    return (4 * g + j) if j < 4 else (16 + 4 * g + j - 4)


def fft_tables():
    out = []
    for w in range(4):
        for sb in range(2):
            for comp in range(3):
                for l in range(64):
                    vals = []
                    for j in range(8):
                        n1 = n1_of_slot(sb, l >> 4, j)
                        ang = 2 * math.pi * ((n1 * (16 * w + (l & 15))) % 64) / 64
                        v = [math.cos(ang), math.sin(ang), -math.sin(ang)][comp]
                        vals.append(bf16_bits(v))
                    for j in range(4):
                        out.append(vals[2 * j] | (vals[2 * j + 1] << 16))
    off_f32 = len(out) * 4
    for t in range(2):
        for comp in range(3):
            for l in range(64):
                vals = []
                for j in range(8):
                    n2 = d16_row_of_slot(l >> 4, j)
                    ang = 2 * math.pi * ((n2 * (16 * t + (l & 15))) % 32) / 32
                    v = [math.cos(ang), math.sin(ang), -math.sin(ang)][comp]
                    vals.append(bf16_bits(v))
                for j in range(4):
                    out.append(vals[2 * j] | (vals[2 * j + 1] << 16))
    off_tw1 = len(out) * 4
    for w in range(4):
        for comp in range(2):
            for t in range(2):
                for l in range(64):
                    for i in range(4):
                        n2 = 16 * t + 4 * (l >> 4) + i
                        ang = 2 * math.pi * (n2 * (16 * w + (l & 15))) / 2048
                        out.append(f32_bits([math.cos(ang), math.sin(ang)][comp]))
    off_tw2 = len(out) * 4
    for w in range(4):
        for comp in range(2):
            for t in range(2):
                for l in range(64):
                    for i in range(4):
                        k1 = 16 * w + 4 * (l >> 4) + i
                        ang = 2 * math.pi * (k1 * (16 * t + (l & 15))) / 2048
                        out.append(f32_bits([math.cos(ang), math.sin(ang)][comp]))
    return out, off_f32, off_tw1, off_tw2


FFT_TAB, OFF_F32, OFF_TW1, OFF_TW2 = fft_tables()


def gen_k2():
    k = Kern("k2_fft_kernel")
    X = 0
    F64 = 32
    F32 = 56
    TW1 = 80
    TW2 = 96
    WV = 112
    Y = 144
    P = 160
    WF = 168
    Q = 184
    T = 200
    L = 220
    k("""
    s_cmp_ge_u32 s2, 256
    s_cbranch_scc1 K2_END
    s_load_dwordx2 s[10:11], s[0:1], 72
    v_lshrrev_b32 v{T}, 6, v0
    v_and_b32 v{L}, 63, v0
    v_readfirstlane_b32 s45, v{T}
    """.format(T=T, L=L))
    table_srd(k, 24, "tabFFT", len(FFT_TAB) * 4)
    k("v_lshlrev_b32 v%d, 4, v%d" % (T + 1, L))
    k("s_mul_i32 s46, s45, 6144")
    k("s_lshl_b32 s47, s45, 12")
    k("s_add_u32 s48, s47, %d" % OFF_TW2)
    k("s_add_u32 s47, s47, %d" % OFF_TW1)
    k("s_mov_b32 s49, %d" % OFF_F32)
    k("s_waitcnt lgkmcnt(0)")
    srd(k, 12, 10, 11, X1T_BYTES, WS_X1T)
    srd(k, 16, 10, 11, WT_BYTES, WS_WT)
    srd(k, 20, 10, 11, X1T_BYTES, WS_ZT)
    k("v_and_b32 v%d, 15, v%d" % (T + 2, L))
    k("v_lshlrev_b32 v%d, 7, v%d" % (T + 2, T + 2))
    k("v_lshrrev_b32 v%d, 4, v%d" % (T + 3, L))
    k("v_lshl_add_u32 v%d, v%d, 4, v%d" % (T + 2, T + 3, T + 2))
    k("s_lshl_b32 s50, s2, 12")
    k("s_add_u32 s51, s50, 0x100000")
    for comp in range(2):
        for t in range(2):
            for sb in range(2):
                r = X + ((comp * 2 + t) * 2 + sb) * 4
                k("buffer_load_dwordx4 v[%d:%d], v%d, s[12:15], s%d offen offset:%d" % (r, r + 3, T + 2, 50 + comp, t * 2048 + sb * 64))
    for i in range(6):
        if i < 4:
            k("buffer_load_dwordx4 v[%d:%d], v%d, s[24:27], s46 offen offset:%d" % (F64 + 4 * i, F64 + 4 * i + 3, T + 1, 1024 * i))
        else:
            if i == 4:
                k("s_add_u32 s46, s46, 4096")
            k("buffer_load_dwordx4 v[%d:%d], v%d, s[24:27], s46 offen offset:%d" % (F64 + 4 * i, F64 + 4 * i + 3, T + 1, 1024 * (i - 4)))
    for i in range(4):
        k("buffer_load_dwordx4 v[%d:%d], v%d, s[24:27], s47 offen offset:%d" % (TW1 + 4 * i, TW1 + 4 * i + 3, T + 1, 1024 * i))
    for i in range(6):
        if i == 4:
            k("s_add_u32 s49, s49, 4096")
        k("buffer_load_dwordx4 v[%d:%d], v%d, s[24:27], s49 offen offset:%d" % (F32 + 4 * i, F32 + 4 * i + 3, T + 1, 1024 * (i % 4)))
    k("v_lshl_add_u32 v%d, v%d, 4, v%d" % (T + 4, T + 3, T + 2))
    k("s_lshl_b32 s52, s2, 13")
    k("s_lshl_b32 s53, s45, 11")
    k("s_add_u32 s52, s52, s53")
    k("buffer_load_dwordx4 v[%d:%d], v%d, s[16:19], s52 offen" % (WV, WV + 3, T + 4))
    k("buffer_load_dwordx4 v[%d:%d], v%d, s[16:19], s52 offen offset:16" % (WV + 4, WV + 7, T + 4))
    for i in range(4):
        k("buffer_load_dwordx4 v[%d:%d], v%d, s[24:27], s48 offen offset:%d" % (TW2 + 4 * i, TW2 + 4 * i + 3, T + 1, 1024 * i))
    k("s_cmp_lg_u32 s2, 0")
    k("s_cbranch_scc1 K2_NOSPEC")
    for n, col in enumerate((257, 256, 258)):
        k("s_add_u32 s54, s53, %d" % (col * 8192))
        k("buffer_load_dwordx4 v[%d:%d], v%d, s[16:19], s54 offen" % (WV + 8 + 8 * n, WV + 11 + 8 * n, T + 4))
        k("buffer_load_dwordx4 v[%d:%d], v%d, s[16:19], s54 offen offset:16" % (WV + 12 + 8 * n, WV + 15 + 8 * n, T + 4))
    k("K2_NOSPEC:")
    k("s_waitcnt vmcnt(0)")

    def xf(comp, t, sb):
        r = X + ((comp * 2 + t) * 2 + sb) * 4
        return "v[%d:%d]" % (r, r + 3)

    def f64(sb, c):
        r = F64 + (sb * 3 + c) * 4
        return "v[%d:%d]" % (r, r + 3)

    def f32(t, c):
        r = F32 + (t * 3 + c) * 4
        return "v[%d:%d]" % (r, r + 3)

    def y(comp, t):
        r = Y + (comp * 2 + t) * 4
        return "v[%d:%d]" % (r, r + 3)

    def mf(d, a, b, first):
        k("v_mfma_f32_16x16x32_bf16 %s, %s, %s, %s" % (d, a, b, "0" if first else d))

    def cmul_pack(tw, sign, dst):
        for e in range(8):
            yr, yi, c, s = Y + e, Y + 8 + e, tw + e, tw + 8 + e
            k("v_mul_f32 v%d, v%d, v%d" % (T + 8, yr, c))
            k("v_mul_f32 v%d, v%d, v%d" % (T + 9, yi, c))
            k("v_fma_f32 v%d, %sv%d, v%d, v%d" % (T + 9, "" if sign > 0 else "-", yr, s, T + 9))
            k("v_fma_f32 v%d, %sv%d, v%d, v%d" % (yr, "-" if sign > 0 else "", yi, s, T + 8))
            k("v_mov_b32 v%d, v%d" % (yi, T + 9))
        for i in range(4):
            k("v_cvt_pk_bf16_f32 v%d, v%d, v%d" % (dst + i, Y + 2 * i, Y + 2 * i + 1))
            k("v_cvt_pk_bf16_f32 v%d, v%d, v%d" % (dst + 4 + i, Y + 8 + 2 * i, Y + 9 + 2 * i))

    def forward(mode):
        for t in range(2):
            first = True
            for sb in range(2):
                if mode != 2:
                    mf(y(0, t), xf(0, t, sb), f64(sb, 0), first)
                    mf(y(1, t), xf(0, t, sb), f64(sb, 2), first)
                    first = False
                if mode != 1:
                    mf(y(0, t), xf(1, t, sb), f64(sb, 1), first)
                    mf(y(1, t), xf(1, t, sb), f64(sb, 0), first)
                    first = False
        cmul_pack(TW1, -1, P)
        pr, pi = "v[%d:%d]" % (P, P + 3), "v[%d:%d]" % (P + 4, P + 7)
        for t in range(2):
            mf(y(0, t), f32(t, 0), pr, True)
            mf(y(1, t), f32(t, 0), pi, True)
            mf(y(0, t), f32(t, 1), pi, False)
            mf(y(1, t), f32(t, 2), pr, False)

    def unpack_w(src, dst):
        for i in range(8):
            k("v_lshlrev_b32 v%d, 16, v%d" % (dst + 2 * i, src + i))
            k("v_and_b32 v%d, 0xffff0000, v%d" % (dst + 2 * i + 1, src + i))

    def wmul(acc):
        for e in range(8):
            yr, yi, wr, wi = Y + e, Y + 8 + e, WF + e, WF + 8 + e
            if acc:
                k("v_fmac_f32 v%d, v%d, v%d" % (Q + e, yr, wr))
                k("v_fmac_f32 v%d, v%d, v%d" % (Q + 8 + e, yi, wr))
            else:
                k("v_mul_f32 v%d, v%d, v%d" % (Q + e, yr, wr))
                k("v_mul_f32 v%d, v%d, v%d" % (Q + 8 + e, yi, wr))
            k("v_fma_f32 v%d, -v%d, v%d, v%d" % (Q + e, yi, wi, Q + e))
            k("v_fmac_f32 v%d, v%d, v%d" % (Q + 8 + e, yr, wi))

    sc_n = 2.0 / (512 * 2048)
    sc_s = 0.5 / (512 * 2048)
    k("s_cmp_eq_u32 s2, 0")
    k("s_cbranch_scc1 K2_SPEC")
    forward(0)
    unpack_w(WV, WF)
    for i in range(16):
        k("v_mul_f32 v%d, 0x%x, v%d" % (WF + i, f32_bits(sc_n), WF + i))
    wmul(False)
    k("s_branch K2_INV")
    k("K2_SPEC:")
    for ps in range(2):
        forward(1 + ps)
        a, b = (WV, WV + 8) if ps == 0 else (WV + 16, WV + 24)
        unpack_w(a, WF)
        unpack_w(b, TW1 if False else T + 24)
        for i in range(8):
            k("v_add_f32 v%d, v%d, v%d" % (WF + i, WF + i, T + 24 + i))
            k("v_sub_f32 v%d, v%d, v%d" % (WF + 8 + i, WF + 8 + i, T + 32 + i))
        for i in range(16):
            k("v_mul_f32 v%d, 0x%x, v%d" % (WF + i, f32_bits(sc_s), WF + i))
        wmul(ps == 1)
    k("K2_INV:")
    for i in range(4):
        k("v_cvt_pk_bf16_f32 v%d, v%d, v%d" % (P + i, Q + 2 * i, Q + 2 * i + 1))
        k("v_cvt_pk_bf16_f32 v%d, v%d, v%d" % (P + 4 + i, Q + 8 + 2 * i, Q + 9 + 2 * i))
    pr, pi = "v[%d:%d]" % (P, P + 3), "v[%d:%d]" % (P + 4, P + 7)
    for t in range(2):
        mf(y(0, t), pr, f32(t, 0), True)
        mf(y(1, t), pi, f32(t, 0), True)
        mf(y(0, t), pi, f32(t, 2), False)
        mf(y(1, t), pr, f32(t, 1), False)
    cmul_pack(TW2, +1, P)
    ROW = 144
    k("v_and_b32 v%d, 15, v%d" % (T + 5, L))
    k("v_mul_u32_u24 v%d, %d, v%d" % (T + 5, ROW, T + 5))
    k("v_and_b32 v%d, 1, v%d" % (T + 6, T + 3))
    k("v_lshl_add_u32 v%d, v%d, 4, v%d" % (T + 6, T + 6, T + 5))
    k("v_lshrrev_b32 v%d, 1, v%d" % (T + 7, T + 3))
    k("v_lshl_add_u32 v%d, v%d, 3, v%d" % (T + 6, T + 7, T + 6))
    k("s_lshl_b32 s55, s45, 5")
    k("v_add_u32 v%d, s55, v%d" % (T + 6, T + 6))
    for comp in range(2):
        for t in range(2):
            r = P + comp * 4 + t * 2
            k("ds_write_b64 v%d, v[%d:%d] offset:%d" % (T + 6, r, r + 1, (comp * 32 + t * 16) * ROW))
    k("v_lshl_add_u32 v%d, v%d, 4, v%d" % (T + 5, T + 3, T + 5))
    k("s_waitcnt lgkmcnt(0)")
    k("s_barrier")
    for comp in range(2):
        for t in range(2):
            for sb in range(2):
                r = X + ((comp * 2 + t) * 2 + sb) * 4
                k("ds_read_b128 v[%d:%d], v%d offset:%d" % (r, r + 3, T + 5, (comp * 32 + t * 16) * ROW + sb * 64))
    k("s_waitcnt lgkmcnt(0)")
    for t in range(2):
        for sb in range(2):
            mf(y(0, t), xf(0, t, sb), f64(sb, 0), sb == 0)
            mf(y(1, t), xf(0, t, sb), f64(sb, 1), sb == 0)
            mf(y(0, t), xf(1, t, sb), f64(sb, 2), False)
            mf(y(1, t), xf(1, t, sb), f64(sb, 0), False)
    for i in range(4):
        k("v_cvt_pk_bf16_f32 v%d, v%d, v%d" % (P + i, Y + 2 * i, Y + 2 * i + 1))
        k("v_cvt_pk_bf16_f32 v%d, v%d, v%d" % (P + 4 + i, Y + 8 + 2 * i, Y + 9 + 2 * i))
    k("v_and_b32 v%d, 15, v%d" % (T + 5, L))
    k("v_lshlrev_b32 v%d, 6, v%d" % (T + 5, T + 5))
    k("v_lshl_add_u32 v%d, v%d, 4, v%d" % (T + 5, T + 3, T + 5))
    k("s_lshl_b32 s55, s45, 10")
    k("s_add_u32 s50, s50, s55")
    k("s_add_u32 s51, s51, s55")
    k("buffer_store_dwordx4 v[%d:%d], v%d, s[20:23], s50 offen" % (P, P + 3, T + 5))
    k("buffer_store_dwordx4 v[%d:%d], v%d, s[20:23], s51 offen" % (P + 4, P + 7, T + 5))
    k("K2_END:")
    k("s_endpgm")
    return k


def gen_k3(R=7):
    k = Kern("k3_gemm2_kernel")
    ACC = 0
    DF = 64
    LF = DF + 8 * 8
    T = LF + 16
    L = T + 20
    assert R <= 8
    k("""
    s_cmp_ge_u32 s2, 256
    s_cbranch_scc1 K3_END
    s_load_dwordx2 s[4:5], s[0:1], 0      ; x
    s_load_dwordx4 s[8:11], s[0:1], 48    ; wd, out
    s_load_dwordx2 s[6:7], s[0:1], 72     ; ws
    v_lshrrev_b32 v{T}, 6, v0
    v_and_b32 v{L}, 63, v0
    v_readfirstlane_b32 s45, v{T}
    v_mov_b32 v{TID}, v0
    s_and_b32 s40, s2, 7                  ; xcd
    s_lshr_b32 s41, s2, 3                 ; idx 0..31
    s_lshl_b32 s42, s40, 2
    s_and_b32 s43, s41, 3
    s_add_u32 s42, s42, s43               ; mt (0..31) : 4 per xcd
    s_lshr_b32 s43, s41, 2                ; nt (0..7)
    """.format(T=T, L=L, TID=L + 1))
    table_srd(k, 24, "tabG", 512 * 1024)
    k("s_waitcnt lgkmcnt(0)")
    srd(k, 12, 6, 7, H_BYTES, WS_H)
    srd(k, 16, 8, 9, 1792 * 512 * 2)
    srd(k, 20, 6, 7, X1T_BYTES, WS_ZT)
    srd(k, 28, 4, 5, XN_BYTES)
    srd(k, 32, 10, 11, XN_BYTES)
    V16 = T + 1
    DW = T + 2
    DZ = T + 4
    RW = T + 6
    RZ = T + 8
    t0, t1, t2 = T + 10, T + 11, T + 12
    k("v_lshlrev_b32 v%d, 4, v%d" % (V16, L))
    k("v_lshrrev_b32 v%d, 3, v%d" % (t0, L))
    k("v_bfe_u32 v%d, v%d, 2, 1" % (t1, L))
    k("v_bfe_u32 v%d, v%d, 4, 1" % (t2, L))
    k("v_xor_b32 v%d, v%d, v%d" % (t1, t1, t2))
    k("v_lshlrev_b32 v%d, 6, v%d" % (t1, t1))
    k("v_and_b32 v%d, 3, v%d" % (t2, L))
    k("v_lshl_add_u32 v%d, v%d, 4, v%d" % (t1, t2, t1))
    k("v_lshl_add_u32 v%d, v%d, 10, v%d" % (DW, t0, t1))
    k("v_add_u32 v%d, %d, v%d" % (DW + 1, 8 * 1024 - 1024, DW))
    k("v_lshl_add_u32 v%d, v%d, 12, v%d" % (DZ, t0, t1))
    k("v_add_u32 v%d, %d, v%d" % (DZ + 1, 8 * 4096 - 1024, DZ))
    k("v_bfe_u32 v%d, v%d, 2, 2" % (t0, L))
    k("v_lshrrev_b32 v%d, 5, v%d" % (t1, L))
    k("v_lshl_add_u32 v%d, v%d, 2, v%d" % (t2, t1, t0))
    k("v_lshlrev_b32 v%d, 7, v%d" % (t2, t2))
    k("s_lshl_b32 s46, s45, 14")
    k("v_add_u32 v%d, s46, v%d" % (t2, t2))
    k("v_bfe_u32 v%d, v%d, 3, 1" % (RW, L))
    k("v_lshl_add_u32 v%d, v%d, 6, v%d" % (RW, RW, t2))
    k("v_bfe_u32 v%d, v%d, 4, 1" % (RZ, L))
    k("v_lshl_add_u32 v%d, v%d, 5, v%d" % (RW, RZ, RW))
    k("v_and_b32 v%d, 3, v%d" % (RZ + 1, L))
    k("v_lshl_add_u32 v%d, v%d, 3, v%d" % (RW, RZ + 1, RW))
    k("v_xor_b32 v%d, 64, v%d" % (RW + 1, RW))
    k("v_lshl_add_u32 v%d, v%d, 3, v%d" % (t2, t1, t0))
    k("v_lshlrev_b32 v%d, 7, v%d" % (t2, t2))
    k("v_add_u32 v%d, s46, v%d" % (t2, t2))
    k("v_lshl_add_u32 v%d, v%d, 3, v%d" % (t2, RZ, t2))
    k("v_lshl_add_u32 v%d, v%d, 4, v%d" % (t2, RZ + 1, t2))
    k("v_bfe_u32 v%d, v%d, 3, 1" % (t0, L))
    k("v_lshl_add_u32 v%d, v%d, 6, v%d" % (RZ, t0, t2))
    k("v_xor_b32 v%d, 64, v%d" % (RZ + 1, RZ))
    k("s_mul_i32 s48, s42, 224")
    k("s_mul_i32 s49, s45, 28")
    k("s_add_u32 s48, s48, s49")
    k("s_lshl_b32 s48, s48, 10")
    k("s_add_u32 s50, s48, %d" % (112 * 1024))
    k("s_lshl_b32 s51, s49, 14")
    k("s_lshl_b32 s52, s43, 7")
    k("s_add_u32 s51, s51, s52")
    k("s_lshl_b32 s53, s43, 16")
    k("s_lshl_b32 s54, s45, 13")
    k("s_add_u32 s53, s53, s54")
    k("s_add_u32 s55, s53, 32768")
    k("s_lshl_b32 s56, s45, 19")
    k("s_lshl_b32 s57, s42, 7")
    k("s_add_u32 s56, s56, s57")
    for i in range(64):
        k("v_mov_b32 v%d, 0" % i)
    NK = 36

    def issue(n):
        slot = n % R
        d = DF + 8 * slot
        k("s_add_u32 m0, s46, %d" % (slot * 2048))
        if n < 28:
            k("buffer_load_dwordx4 v[%d:%d], v%d, s[12:15], s48 offen" % (d, d + 3, V16))
            k("buffer_load_dwordx4 v[%d:%d], v%d, s[12:15], s50 offen" % (d + 4, d + 7, V16))
            k("buffer_load_dwordx4 v%d, s[16:19], s51 offen lds" % DW)
            k("buffer_load_dwordx4 v%d, s[16:19], s51 offen offset:1024 lds" % (DW + 1))
            k("s_add_u32 s48, s48, 1024")
            k("s_add_u32 s50, s50, 1024")
            k("s_add_u32 s51, s51, 16384")
        else:
            k("buffer_load_dwordx4 v[%d:%d], v%d, s[24:27], s53 offen" % (d, d + 3, V16))
            k("buffer_load_dwordx4 v[%d:%d], v%d, s[24:27], s55 offen" % (d + 4, d + 7, V16))
            k("buffer_load_dwordx4 v%d, s[20:23], s56 offen lds" % DZ)
            k("buffer_load_dwordx4 v%d, s[20:23], s56 offen offset:1024 lds" % (DZ + 1))
            k("s_add_u32 s53, s53, 1024")
            k("s_add_u32 s55, s55, 1024")
            k("s_add_u32 s56, s56, 65536")

    def lds_reads(n):
        slot = n % R
        f = LF + 8 * (n % 2)
        ra, second = (RW, 1024) if n < 28 else (RZ, 512)
        for b in range(2):
            k("ds_read_b64_tr_b16 v[%d:%d], v%d offset:%d" % (f + 4 * b, f + 4 * b + 1, ra + b, slot * 2048))
            k("ds_read_b64_tr_b16 v[%d:%d], v%d offset:%d" % (f + 4 * b + 2, f + 4 * b + 3, ra + b, slot * 2048 + second))

    def mf(n):
        slot = n % R
        d = DF + 8 * slot
        f = LF + 8 * (n % 2)
        for nb in range(2):
            for sb in range(2):
                a = ACC + (nb * 2 + sb) * 16
                if n < 28:
                    A, B = f + 4 * nb, d + 4 * sb
                else:
                    A, B = d + 4 * nb, f + 4 * sb
                k("v_mfma_f32_32x32x16_bf16 v[%d:%d], v[%d:%d], v[%d:%d], v[%d:%d]" % (a, a + 15, A, A + 3, B, B + 3, a, a + 15))

    for n in range(R):
        issue(n)
    k("s_waitcnt vmcnt(%d)" % (4 * (R - 1)))
    lds_reads(0)
    for n in range(NK):
        if n + 1 < NK:
            last = min(n + R - 1, NK - 1)
            k("s_waitcnt vmcnt(%d) lgkmcnt(0)" % (4 * (last - (n + 1))))
            lds_reads(n + 1)
        else:
            k("s_waitcnt lgkmcnt(0)")
        mf(n)
        if n + R < NK:
            issue(n + R)
    RS = 272
    k("s_barrier")
    k("v_and_b32 v%d, 31, v%d" % (t0, L))
    k("v_mul_u32_u24 v%d, %d, v%d" % (t0, RS, t0))
    k("v_lshrrev_b32 v%d, 5, v%d" % (t1, L))
    k("v_lshl_add_u32 v%d, v%d, 4, v%d" % (t0, t1, t0))
    k("s_mul_i32 s58, s45, %d" % (64 * RS))
    k("v_add_u32 v%d, s58, v%d" % (t0, t0))
    for nb in range(2):
        for sb in range(2):
            a = ACC + (nb * 2 + sb) * 16
            for q in range(4):
                k("ds_write_b128 v%d, v[%d:%d] offset:%d" % (t0, a + 4 * q, a + 4 * q + 3, sb * 32 * RS + (nb * 32 + q * 8) * 4))
    TID = L + 1
    k("v_lshrrev_b32 v%d, 2, v%d" % (t1, TID))
    k("v_and_b32 v%d, 3, v%d" % (t2, TID))
    k("v_lshlrev_b32 v%d, 10, v%d" % (DW, t1))
    k("v_lshl_add_u32 v%d, v%d, 5, v%d" % (DW, t2, DW))
    k("s_lshl_b32 s59, s42, 16")
    k("s_add_u32 s59, s59, s52")
    k("buffer_load_dwordx4 v[%d:%d], v%d, s[28:31], s59 offen" % (DF, DF + 3, DW))
    k("buffer_load_dwordx4 v[%d:%d], v%d, s[28:31], s59 offen offset:16" % (DF + 4, DF + 7, DW))
    k("v_mul_u32_u24 v%d, %d, v%d" % (t1, RS, t1))
    k("v_lshl_add_u32 v%d, v%d, 6, v%d" % (t1, t2, t1))
    k("s_waitcnt lgkmcnt(0)")
    k("s_barrier")
    for w in range(4):
        for q in range(4):
            k("ds_read_b128 v[%d:%d], v%d offset:%d" % (16 * w + 4 * q, 16 * w + 4 * q + 3, t1, w * 64 * RS + q * 16))
    k("s_waitcnt vmcnt(0) lgkmcnt(0)")
    for i in range(16):
        k("v_add_f32 v%d, v%d, v%d" % (i, i, 16 + i))
        k("v_add_f32 v%d, v%d, v%d" % (32 + i, 32 + i, 48 + i))
    for i in range(8):
        k("v_lshlrev_b32 v%d, 16, v%d" % (16 + 2 * i, DF + i))
        k("v_and_b32 v%d, 0xffff0000, v%d" % (17 + 2 * i, DF + i))
    for i in range(16):
        k("v_add_f32 v%d, v%d, v%d" % (i, i, 32 + i))
        k("v_add_f32 v%d, v%d, v%d" % (i, i, 16 + i))
    for i in range(8):
        k("v_cvt_pk_bf16_f32 v%d, v%d, v%d" % (DF + 8 + i, 2 * i, 2 * i + 1))
    k("buffer_store_dwordx4 v[%d:%d], v%d, s[32:35], s59 offen" % (DF + 8, DF + 11, DW))
    k("buffer_store_dwordx4 v[%d:%d], v%d, s[32:35], s59 offen offset:16" % (DF + 12, DF + 15, DW))
    k("K3_END:")
    k("s_endpgm")
    return k


def tables_text():
    s = ".section .rodata,\"a\"\n.p2align 8\n"
    for i in range(512):
        s += ".set tc%d, 0x%04x\n" % (i, bf16_bits(math.cos(2 * math.pi * i / 512)))
    s += """.altmacro
.macro tent i
.short tc\\i
.endm
tabF:
.set td, 0
.rept 512
.set tk, 0
.rept 257
tent %((td*tk)&511)
.set tk, tk+1
.endr
.set tk, 1
.rept 255
tent %((td*tk+128)&511)
.set tk, tk+1
.endr
.set td, td+1
.endr
.p2align 8
tabG:
.set tb, 0
.rept 512
.set tl, 0
.rept 64
.set td, ((tb>>5)*32)+(tl&31)
.set tk, ((tb&31)*16)+((tl>>5)*8)
.rept 8
.if tk <= 256
tent %((td*tk)&511)
.else
tent %((td*(tk-256)+128)&511)
.endif
.set tk, tk+1
.endr
.set tl, tl+1
.endr
.set tb, tb+1
.endr
.noaltmacro
.p2align 8
tabFFT:
"""
    for i in range(0, len(FFT_TAB), 8):
        s += ".long " + ",".join("0x%x" % v for v in FFT_TAB[i:i + 8]) + "\n"
    return s


def main(path):
    ks = [gen_k0(), gen_k1(), gen_k2(), gen_k3()]
    ref = open("cdna_kernels/%s.s.ref" % NAME).read().split("\n")
    hdr = [l for l in ref if l.startswith(";") and "@launch" not in l and "Override launch" not in l and "grid=ceil" not in l]
    hdr = hdr[:11]
    lds = {"k0_prep_kernel": 0, "k1_gemm1_kernel": 147456, "k2_fft_kernel": 64 * 144, "k3_gemm2_kernel": 4 * 64 * 272}
    out = "\n".join(hdr) + "\n"
    for kk in ks:
        out += "; @launch kernel=%s grid=(256,1,1) block=(256,1,1) lds=%d\n" % (kk.name, lds[kk.name])
    out += ".amdgcn_target \"amdgcn-amd-amdhsa--gfx950\"\n"
    for kk in ks:
        out += kernel_text(kk)
    for kk in ks:
        out += descriptor(kk)
    out += tables_text()
    open(path, "w").write(out)
    for kk in ks:
        print(kk.name, kk.max_regs(), len(kk.lines))


if __name__ == "__main__":
    main(sys.argv[1] if len(sys.argv) > 1 else "cdna_kernels/%s.s" % NAME)
```
